```python
import torch

def _softmax(x, axis=-1):
    return torch.softmax(x, dim=axis)
def _gelu(x):
    return torch.nn.functional.gelu(x, approximate="tanh")
def _silu(x):
    return torch.nn.functional.silu(x)
def _sigmoid(x):
    return torch.sigmoid(x)
def _layernorm(x, axis=-1, eps=1e-5):
    m = x.mean(dim=axis, keepdim=True)
    v = x.var(dim=axis, keepdim=True, unbiased=False)
    return (x - m) / torch.sqrt(v + eps)
def _scatter_add(tgt, idx, src, axis=0):
    return tgt.clone().index_add_(axis, idx, src)
def _segment_sum(src, seg, n):
    out = torch.zeros((n,) + src.shape[1:], dtype=src.dtype)
    return out.index_add_(0, seg, src)
def _pad(x, pw):
    flat = tuple(v for pair in reversed(pw) for v in pair)
    return torch.nn.functional.pad(x, flat)

kernel_name = 'standalone__mha_block_cached__near_ridge'

def setup_inputs():

    _w = (lambda a: (lambda t: t.to(torch.bfloat16) if t.is_floating_point() else t)(torch.as_tensor(a)))
    B, Sq, D = 16, 128, 512
    H, Sk, Dh = 32, 512, 128
    return {
        "x": _w((lambda *s: torch.randn(*s, dtype=torch.bfloat16) * 0.8)(B, Sq, D)),
        "k_cache": _w((lambda *s: torch.randn(*s, dtype=torch.bfloat16) * 0.8)(B, H, Sk, Dh)),
        "v_cache": _w((lambda *s: torch.randn(*s, dtype=torch.bfloat16) * 0.05)(B, H, Sk, Dh)),
        "wq": _w((lambda *s: torch.randn(*s, dtype=torch.bfloat16) * 0.8)(D, H * Dh) * (D ** -0.5)),
        "wo": _w((lambda *s: torch.randn(*s, dtype=torch.bfloat16) * 0.05)(H * Dh, D) * ((H * Dh) ** -0.5)),
    }

def reference(x, k_cache, v_cache, wq, wo):
    B, Sq, D = x.shape
    H, Dh = 32, 128
    q = (lambda x, *d: x.permute(*d))((x @ wq).reshape(B, Sq, H, Dh), 0, 2, 1, 3)
    scores = torch.einsum("bhqd,bhkd->bhqk", q, k_cache) * (Dh ** -0.5)
    p = _softmax(scores, axis=-1)
    o = torch.einsum("bhqk,bhkd->bhqd", p, v_cache)
    return (lambda x, *d: x.permute(*d))(o, 0, 2, 1, 3).reshape(B, Sq, H * Dh) @ wo
```

```python
import re, copy

REG_RE = re.compile(r"\b([vas])\[(\d+):(\d+)\]|\b([vas])(\d+)\b|\b(vcc|exec|m0|scc)\b")

def regs_of(tok):
    out = []
    for m in REG_RE.finditer(tok):
        if m.group(1):
            out += [(m.group(1), i) for i in range(int(m.group(2)), int(m.group(3)) + 1)]
        elif m.group(4):
            out.append((m.group(4), int(m.group(5))))
        else:
            out.append(("x", m.group(6)))
    return out

TRANS = ("v_exp_f32", "v_log_f32", "v_rcp_f32", "v_rsq_f32", "v_sqrt_f32", "v_sin_f32", "v_cos_f32")

class Ins:
    __slots__ = ("text", "op", "kind", "reads", "writes", "srcc", "ab", "lds_dma", "wide_store")
    def __init__(self, text):
        self.text = text
        t = text.split(";")[0].strip()
        parts = t.split(None, 1)
        op = parts[0]
        self.op = op
        rest = parts[1] if len(parts) > 1 else ""
        ops = [o.strip() for o in rest.split(",")] if rest else []
        self.reads, self.writes, self.srcc, self.ab = [], [], [], []
        self.lds_dma = False
        self.wide_store = False
        R = lambda lst: [r for o in lst for r in regs_of(o)]
        if op.startswith("v_mfma"):
            self.kind = "mfma"
            self.writes = R(ops[0:1]); self.ab = R(ops[1:3]); self.srcc = R(ops[3:4])
            self.reads = self.ab + self.srcc
        elif op.startswith("v_cmp"):
            self.kind = "valu"; self.writes = R(ops[0:1]); self.reads = R(ops[1:])
        elif op.startswith("v_permlane") and "swap" in op:
            self.kind = "valu"; self.writes = R(ops); self.reads = R(ops)
        elif op.startswith("v_readfirstlane") or op.startswith("v_readlane"):
            self.kind = "valu"; self.writes = R(ops[0:1]); self.reads = R(ops[1:])
        elif op.startswith("v_"):
            self.kind = "valu"; self.writes = R(ops[0:1]); self.reads = R(ops[1:])
            if op.startswith("v_fmac") or op.startswith("v_pk_fmac"):
                self.reads += self.writes
            if op.startswith("v_add_co") or op.startswith("v_addc_co") or op.startswith("v_sub_co"):
                self.writes = R(ops[0:2]); self.reads = R(ops[2:])
            if op.startswith("v_cndmask") and len(ops) == 3:
                self.reads.append(("x", "vcc"))
        elif op.startswith("ds_read") or op.startswith("ds_bpermute") or op.startswith("ds_swizzle"):
            self.kind = "ds"; self.writes = R(ops[0:1]); self.reads = R(ops[1:])
        elif op.startswith("ds_"):
            self.kind = "ds"; self.reads = R(ops)
        elif op.startswith("buffer_load") or op.startswith("global_load"):
            self.kind = "vmem"
            if re.search(r"\blds\b", t) or "_lds_" in op:
                self.lds_dma = True; self.reads = R(ops) + [("x", "m0")]
            else:
                self.writes = R(ops[0:1]); self.reads = R(ops[1:])
        elif op.startswith("buffer_store") or op.startswith("global_store"):
            self.kind = "vmem"; self.reads = R(ops)
            self.wide_store = op.endswith("x4") or op.endswith("x3")
        elif op.startswith("buffer_atomic") or op.startswith("global_atomic"):
            self.kind = "vmem"; self.reads = R(ops)
            if re.search(r"\bsc0\b", t):
                self.writes = R(ops[0:1])
        elif op.startswith("buffer_"):
            self.kind = "vmem"
        elif op.startswith("s_load") or op.startswith("s_memtime") or op.startswith("s_memrealtime"):
            self.kind = "smem"; self.writes = R(ops[0:1]); self.reads = R(ops[1:])
        elif op.startswith("s_cmp") or op.startswith("s_bitcmp"):
            self.kind = "salu"; self.reads = R(ops)
        elif op in ("s_waitcnt", "s_barrier", "s_nop", "s_endpgm", "s_setprio", "s_sleep") or op.startswith("s_cbranch") or op == "s_branch":
            self.kind = "ctl"
        elif op.startswith("s_"):
            self.kind = "salu"; self.writes = R(ops[0:1]); self.reads = R(ops[1:])
        else:
            raise ValueError("unknown op: " + text)

class State:
    def __init__(self):
        self.t = 0
        self.valu_w = {}
        self.trans_w = {}
        self.mfma_w = {}
        self.mfma_c = {}
        self.salu_m0 = -100
        self.store_r = {}
        self.lgkm = []
        self.vm = []

class Asm:
    def __init__(self):
        self.lines = []
        self.st = State()
        self.nops = 0
        self.count = 0
    def raw(self, s):
        self.lines.append(s)
    def label(self, name):
        self.lines.append(name + ":")
    def comment(self, s):
        self.lines.append("    ; " + s)
    def _emit(self, text, slots=1):
        self.lines.append("    " + text)
        self.st.t += slots
        self.count += 1
    def nop(self, n):
        while n > 0:
            k = min(n, 16)
            self._emit("s_nop %d" % (k - 1), k)
            self.nops += k
            n -= k
    def waitcnt(self, vm=None, lgkm=None):
        st = self.st
        parts = []
        if vm is not None:
            assert 0 <= vm <= 63
            parts.append("vmcnt(%d)" % vm)
            if len(st.vm) > vm: st.vm = st.vm[len(st.vm) - vm:] if vm else []
        if lgkm is not None:
            assert 0 <= lgkm <= 15
            parts.append("lgkmcnt(%d)" % lgkm)
            if len(st.lgkm) > lgkm: st.lgkm = st.lgkm[len(st.lgkm) - lgkm:] if lgkm else []
        self._emit("s_waitcnt " + " ".join(parts))
    def wait_tag(self, tag):
        st = self.st
        idx = [i for i, (d, t) in enumerate(st.vm) if t == tag]
        if idx:
            n = len(st.vm) - 1 - idx[-1]
            self.waitcnt(vm=min(n, 62))
    def __call__(self, text, tag=None):
        ins = Ins(text)
        st = self.st
        touched = set(ins.reads) | set(ins.writes)
        need_l = None
        for i, d in enumerate(st.lgkm):
            if d == "smem":
                continue
            if touched & d: need_l = len(st.lgkm) - 1 - i
        need_v = None
        for i, (d, tg) in enumerate(st.vm):
            if d and (touched & d): need_v = len(st.vm) - 1 - i
        if need_l is not None or need_v is not None:
            self.waitcnt(vm=None if need_v is None else min(need_v, 62), lgkm=None if need_l is None else min(need_l, 14))
        need = 0
        def req(t0, ws):
            nonlocal need
            need = max(need, ws - (st.t - t0 - 1))
        k = ins.kind
        if k == "mfma":
            for r in ins.reads:
                if r in st.valu_w: req(st.valu_w[r], 2)
            for r in ins.ab:
                if r in st.mfma_w: req(st.mfma_w[r][0], 12)
            dt = tuple(ins.srcc)
            for r in ins.srcc:
                if r in st.mfma_w and st.mfma_w[r][1] != dt: req(st.mfma_w[r][0], 10)
            for r in ins.writes:
                if r in st.mfma_w and st.mfma_w[r][1] != tuple(ins.writes): req(st.mfma_w[r][0], 12)
            if ("x", "exec") in st.valu_w: req(st.valu_w[("x", "exec")], 4)
        elif k in ("valu", "ds", "vmem"):
            for r in touched:
                if r in st.mfma_w: req(st.mfma_w[r][0], 12)
            if k == "valu":
                for r in ins.writes:
                    if r in st.mfma_c: req(st.mfma_c[r], 7)
                    if r in st.store_r: req(st.store_r[r], 2)
                if ins.op not in TRANS:
                    for r in ins.reads:
                        if r in st.trans_w: req(st.trans_w[r], 1)
                else:
                    for r in ins.reads:
                        if r in st.trans_w: req(st.trans_w[r], 1)
                if ins.op.startswith("v_permlane"):
                    for r in ins.reads:
                        if r in st.valu_w: req(st.valu_w[r], 2)
                if ins.op.startswith("v_readfirstlane") or ins.op.startswith("v_readlane"):
                    for r in ins.reads:
                        if r in st.valu_w: req(st.valu_w[r], 1 if r[0] in "va" else 4)
                for r in ins.reads:
                    if r[0] in "sx" and r in st.valu_w: req(st.valu_w[r], 2)
                if "dpp" in ins.text or "row_" in ins.text or "quad_perm" in ins.text:
                    for r in ins.reads:
                        if r in st.valu_w: req(st.valu_w[r], 2)
            else:
                for r in ins.writes:
                    if r in st.mfma_c: req(st.mfma_c[r], 7)
                    if r in st.store_r: req(st.store_r[r], 1)
                for r in ins.reads:
                    if r in st.trans_w: req(st.trans_w[r], 1)
            if k == "vmem":
                for r in ins.reads:
                    if r[0] in "sx" and r in st.valu_w: req(st.valu_w[r], 5)
                if ins.lds_dma: req(st.salu_m0, 1)
        elif k in ("salu", "smem"):
            for r in ins.reads:
                if r in st.valu_w: req(st.valu_w[r], 2)
        if need > 0:
            self.nop(need)
        t = st.t
        if ins.op == "s_nop":
            self._emit(text, int(text.split()[1]) + 1)
        else:
            self._emit(text)
        for r in ins.writes:
            st.valu_w.pop(r, None); st.trans_w.pop(r, None); st.mfma_w.pop(r, None)
        if k == "valu":
            for r in ins.writes:
                st.valu_w[r] = t
                if ins.op in TRANS: st.trans_w[r] = t
        elif k == "mfma":
            for r in ins.writes: st.mfma_w[r] = (t, tuple(ins.writes))
            for r in ins.srcc: st.mfma_c[r] = t
        elif k == "salu":
            if ("x", "m0") in ins.writes: st.salu_m0 = t
        if k == "ds":
            st.lgkm.append(set(ins.writes))
            assert len(st.lgkm) <= 64
        elif k == "smem":
            st.lgkm.append("smem")
        elif k == "vmem":
            st.vm.append((set(ins.writes), tag))
            if ins.wide_store:
                for r in ins.reads: st.store_r[r] = t
        if ins.op == "s_waitcnt":
            raise ValueError("use waitcnt()")
    def settle(self):
        st = self.st
        need = 0
        for r, (t0, _) in st.mfma_w.items(): need = max(need, 12 - (st.t - t0 - 1))
        for r, t0 in st.valu_w.items(): need = max(need, 5 - (st.t - t0 - 1))
        for r, t0 in st.mfma_c.items(): need = max(need, 7 - (st.t - t0 - 1))
        if need > 0: self.nop(need)
    def reset_state(self, vm=None):
        self.st = State()
        if vm: self.st.vm = vm
    def text(self):
        return "\n".join(self.lines) + "\n"

def interleave(asm, main, fill, per=None):
    def go(x):
        if callable(x): x()
        else: asm(x)
    n = len(main)
    fi = 0
    for i, m in enumerate(main):
        go(m)
        tgt = (len(fill) * (i + 1) + n - 1) // n if per is None else min(len(fill), per * (i + 1))
        while fi < tgt:
            go(fill[fi]); fi += 1
    while fi < len(fill):
        go(fill[fi]); fi += 1
```

```python
import sys, math
from asmlib import Asm, interleave

OUT = sys.argv[1] if len(sys.argv) > 1 else "k1.s"
NAME1 = "standalone__mha_block_cached__near_ridge_kernel"
NAME2 = "mha_outproj_kernel"

def v(a, n=1): return "v%d" % a if n == 1 else "v[%d:%d]" % (a, a + n - 1)
def s(a, n=1): return "s%d" % a if n == 1 else "s[%d:%d]" % (a, a + n - 1)

S_K, S_V, S_WQ, S_X, S_WS, S_WO, S_OUT = 8, 12, 16, 20, 24, 28, 32
sJ, sB, sH, sKV0, sKV1, sT0, sT1, sT2, sC, sCNT, sSLOT, sDELTA, sU, sOB = 36, 37, 38, 39, 40, 41, 42, 43, 44, 45, 46, 47, 48, 49
L_K, L_V, L_SIDE = 0, 49152, 98304
vLANE, vT0, vT1, vT2, vT3, vXO, vL16 = 1, 2, 3, 4, 5, 6, 7
vM, vL, vAL, vMC = 8, 9, 10, 11
vKD, vVD, vWD = 8, 12, 13
vQW = 14
KA, VA, WA = 16, 24, 28
QF, OA, SS, PF, KF, VF = 32, 64, 128, 160, 176, 208
XF = 128
SCALE_C = (128 ** -0.5) * math.log2(math.e)
import struct
def f2u(x): return struct.unpack("<I", struct.pack("<f", x))[0]

def srd(a, dst, src, nbytes):
    a("s_mov_b32 %s, %s" % (s(dst), s(src)))
    a("s_and_b32 %s, %s, 0xffff" % (s(dst + 1), s(src + 1)))
    a("s_mov_b32 %s, 0x%x" % (s(dst + 2), nbytes))
    a("s_mov_b32 %s, 0x20000" % s(dst + 3))

def load_ptrs(a):
    a("s_load_dwordx16 s[52:67], s[0:1], 0")
    a.waitcnt(lgkm=0)
    srd(a, S_X, 52, 2097152)
    srd(a, S_K, 54, 67108864)
    srd(a, S_V, 56, 67108864)
    srd(a, S_WQ, 58, 4194304)
    srd(a, S_WO, 60, 4194304)
    srd(a, S_OUT, 62, 2097152)
    srd(a, S_WS, 66, 268435456)

def tr_lane_parts(a, dst_base, nregs, rowmul_hh, rowbytes, xor_shift, xor_of_r, swapc, base):
    a("v_lshrrev_b32 %s, 2, %s" % (v(vT0), v(vLANE)))
    a("v_and_b32 %s, 3, %s" % (v(vT0), v(vT0)))
    a("v_lshrrev_b32 %s, 5, %s" % (v(vT1), v(vLANE)))
    a("v_mul_u32_u24 %s, %d, %s" % (v(vT1), rowmul_hh, v(vT1)))
    a("v_add_u32 %s, %s, %s" % (v(vT1), v(vT1), v(vT0)))
    a("v_mul_u32_u24 %s, %d, %s" % (v(vT1), rowbytes, v(vT1)))
    a("v_and_b32 %s, 16, %s" % (v(vT2), v(vLANE)))
    a("v_lshlrev_b32 %s, 1, %s" % (v(vT2), v(vT2)))
    a("v_add_u32 %s, %s, %s" % (v(vT1), v(vT1), v(vT2)))
    if swapc:
        a("v_and_b32 %s, 1, %s" % (v(vT2), v(vLANE)))
        a("v_lshlrev_b32 %s, 4, %s" % (v(vT2), v(vT2)))
        a("v_add_u32 %s, %s, %s" % (v(vT1), v(vT1), v(vT2)))
        a("v_and_b32 %s, 2, %s" % (v(vT2), v(vLANE)))
        a("v_lshlrev_b32 %s, 2, %s" % (v(vT2), v(vT2)))
        a("v_add_u32 %s, %s, %s" % (v(vT1), v(vT1), v(vT2)))
    else:
        a("v_and_b32 %s, 3, %s" % (v(vT2), v(vLANE)))
        a("v_lshlrev_b32 %s, 3, %s" % (v(vT2), v(vT2)))
        a("v_add_u32 %s, %s, %s" % (v(vT1), v(vT1), v(vT2)))
    a("v_add_u32 %s, 0x%x, %s" % (v(vT1), base, v(vT1)))
    if xor_shift:
        a("v_lshrrev_b32 %s, %d, %s" % (v(vT0), xor_shift, v(vT0)))
    for dt in range(nregs):
        a("v_xor_b32 %s, %d, %s" % (v(vT2), dt, v(vT0)))
        a("v_lshlrev_b32 %s, 6, %s" % (v(vT2), v(vT2)))
        a("v_add_u32 %s, %s, %s" % (v(dst_base + dt), v(vT1), v(vT2)))

def qproj_chunk_ops(ch, immbase, first):
    reads, mf = [], []
    for ks in range(4):
        for dt in range(4):
            i = ks * 4 + dt
            f = QF + 4 * (i % 8)
            reads.append(["ds_read_b64_tr_b16 %s, %s offset:%d" % (v(f + 2 * p, 2), v(WA + dt), immbase + 4096 * ks + 1024 * p) for p in range(2)])
            c = "0" if (first and ks == 0) else v(OA + 16 * dt, 16)
            mf.append("v_mfma_f32_32x32x16_bf16 %s, %s, %s, %s" % (v(OA + 16 * dt, 16), v(f, 4), v(XF + 4 * (4 * ch + ks), 4), c))
    return reads, mf

def emit_qproj(a, chunks):
    reads, mf = [], []
    for ch, ib, first in chunks:
        r, m = qproj_chunk_ops(ch, ib, first)
        reads += r; mf += m
    D = 6
    for i in range(min(D, len(reads))):
        for x in reads[i]: a(x)
    for i, m in enumerate(mf):
        a(m)
        if i + D < len(reads):
            for x in reads[i + D]: a(x)

def cvt_frags(a, src, dst):
    for i in range(32):
        a("v_cvt_pk_bf16_f32 %s, %s, %s" % (v(dst + i), v(src + 2 * i), v(src + 2 * i + 1)))

def x_loads(a):
    a("v_and_b32 %s, 31, %s" % (v(vT0), v(vLANE)))
    a("v_lshlrev_b32 %s, 10, %s" % (v(vT0), v(vT0)))
    a("v_lshrrev_b32 %s, 5, %s" % (v(vT1), v(vLANE)))
    a("v_lshl_add_u32 %s, %s, 4, %s" % (v(vXO), v(vT1), v(vT0)))
    a("s_lshl_b32 %s, %s, 17" % (s(sT0), s(sB)))
    a("s_lshl_b32 %s, %s, 15" % (s(sT1), s(sJ)))
    a("s_add_u32 %s, %s, %s" % (s(sT0), s(sT0), s(sT1)))
    for k in range(32):
        a("buffer_load_dwordx4 %s, %s, %s, %s offen offset:%d" % (v(XF + 4 * k, 4), v(vXO), s(S_X, 4), s(sT0), 32 * k), tag="x")

def dma_wq(a, sh, ch, ldsbase, tag):
    a("s_lshl_b32 %s, %s, 17" % (s(sT0), s(sJ)))
    a("s_lshl_b32 %s, %s, 8" % (s(sT1), s(sh)))
    a("s_add_u32 %s, %s, %s" % (s(sT0), s(sT0), s(sT1)))
    a("s_add_u32 %s, %s, 0x%x" % (s(sT0), s(sT0), 64 * ch * 8192))
    a("s_lshl_b32 %s, %s, 12" % (s(sT1), s(sJ)))
    a("s_add_u32 m0, %s, 0x%x" % (s(sT1), ldsbase))
    for i in range(4):
        if i: a("s_add_u32 %s, %s, 0x%x" % (s(sT0), s(sT0), 4 * 8192 - 1024))
        a("buffer_load_dwordx4 %s, %s, %s offen offset:%d lds" % (v(vWD), s(S_WQ, 4), s(sT0), 1024 * i), tag=tag)

def dma_kv(a, t):
    u, tl, slot = t >> 3, t & 7, t % 3
    a("s_lshl_b32 %s, %s, 12" % (s(sT1), s(sJ)))
    a("s_add_u32 %s, %s, %s" % (s(sT0), s(sKV0 + u), s(sT1)))
    a("s_add_u32 %s, %s, 0x%x" % (s(sT0), s(sT0), tl * 16384))
    a("s_add_u32 m0, %s, 0x%x" % (s(sT1), L_K + slot * 16384))
    for i in range(4):
        a("buffer_load_dwordx4 %s, %s, %s offen offset:%d nt lds" % (v(vKD + i), s(S_K, 4), s(sT0), 1024 * i), tag="kv%d" % t)
    a("s_add_u32 m0, %s, 0x%x" % (s(sT1), L_V + slot * 16384))
    for i in range(4):
        a("buffer_load_dwordx4 %s, %s, %s offen offset:%d nt lds" % (v(vVD), s(S_V, 4), s(sT0), 1024 * i), tag="kv%d" % t)

def a_step(a):
    S0, S1 = SS, SS + 16
    kread = lambda kb, sx: "ds_read_b128 %s, %s offset:%d" % (v(KF + 4 * sx, 4), v(KA + sx), 8192 * kb)
    def vread(ks, dt):
        f = VF + 4 * ((ks & 1) * 4 + dt)
        return ["ds_read_b64_tr_b16 %s, %s offset:%d" % (v(f + 2 * p, 2), v(VA + dt), 4096 * ks + 2048 * p) for p in range(2)]
    for sx in range(8): a(kread(0, sx))
    for sx in range(8):
        a("v_mfma_f32_32x32x16_bf16 %s, %s, %s, %s" % (v(S0, 16), v(KF + 4 * sx, 4), v(QF + 4 * sx, 4), "0" if sx == 0 else v(S0, 16)))
        a(kread(1, sx))
    fill = []
    for ks in range(2):
        for dt in range(4): fill += vread(ks, dt)
    kaupd = ["v_add_u32 %s, %s, %s" % (v(KA + i), s(sDELTA), v(KA + i)) for i in range(8)]
    def maxops(S, first):
        ops = []
        if first:
            ops.append("v_max3_f32 %s, %s, %s, %s" % (v(vT0), v(S), v(S + 1), v(vM)))
        else:
            ops.append("v_max3_f32 %s, %s, %s, %s" % (v(vT0), v(S), v(S + 1), v(vT0)))
        for i in range(1, 8):
            ops.append("v_max3_f32 %s, %s, %s, %s" % (v(vT0), v(S + 2 * i), v(S + 2 * i + 1), v(vT0)))
        return ops
    mf = ["v_mfma_f32_32x32x16_bf16 %s, %s, %s, %s" % (v(S1, 16), v(KF + 4 * sx, 4), v(QF + 4 * sx, 4), "0" if sx == 0 else v(S1, 16)) for sx in range(8)]
    fill = fill[:12] + kaupd[:4] + maxops(S0, True)[:4] + fill[12:] + kaupd[4:] + maxops(S0, True)[4:]
    interleave(a, mf, fill[:28], per=4)
    for x in fill[28:]: a(x)
    for x in maxops(S1, False): a(x)
    a("v_mov_b32 %s, %s" % (v(vT1), v(vT0)))
    a("v_permlane32_swap_b32 %s, %s" % (v(vT0), v(vT1)))
    a("v_max_f32 %s, %s, %s" % (v(vT0), v(vT0), v(vT1)))
    a("v_sub_f32 %s, %s, %s" % (v(vAL), v(vM), v(vT0)))
    a("v_mul_f32 %s, %s, %s" % (v(vMC), s(sC), v(vT0)))
    a("v_mul_f32 %s, %s, %s" % (v(vAL), s(sC), v(vAL)))
    a("v_mov_b32 %s, %s" % (v(vM), v(vT0)))
    a("v_exp_f32 %s, %s" % (v(vAL), v(vAL)))
    def expops(ks):
        sb = SS + 8 * ks
        o = []
        for j in range(8):
            o.append("v_fma_f32 %s, %s, %s, -%s" % (v(sb + j), v(sb + j), s(sC), v(vMC)))
        for j in range(8):
            o.append("v_exp_f32 %s, %s" % (v(sb + j), v(sb + j)))
        for j in range(4):
            o.append("v_cvt_pk_bf16_f32 %s, %s, %s" % (v(PF + 4 * ks + j), v(sb + 2 * j), v(sb + 2 * j + 1)))
        return o
    def addops(ks):
        sb = SS + 8 * ks
        return ["v_add_f32 %s, %s, %s" % (v(vL), v(vL), v(sb + j)) for j in range(8)]
    resc = lambda dt: ["v_mul_f32 %s, %s, %s" % (v(OA + 16 * dt + i), v(vAL), v(OA + 16 * dt + i)) for i in range(16)]
    pv = lambda ks, dt: "v_mfma_f32_32x32x16_bf16 %s, %s, %s, %s" % (v(OA + 16 * dt, 16), v(VF + 4 * ((ks & 1) * 4 + dt), 4), v(PF + 4 * ks, 4), v(OA + 16 * dt, 16))
    for x in expops(0): a(x)
    a("v_mul_f32 %s, %s, %s" % (v(vL), v(vAL), v(vL)))
    for x in resc(0): a(x)
    e1 = expops(1)
    for dt in range(4):
        a(pv(0, dt))
        for x in vread(2, dt): a(x)
        if dt < 3:
            for x in resc(dt + 1): a(x)
        for x in e1[5 * dt:5 * dt + 5]: a(x)
    for ks in range(1, 4):
        fill = addops(ks - 1) + (expops(ks + 1) if ks < 3 else addops(3))
        fill = (expops(ks + 1) + addops(ks - 1)) if ks < 3 else (addops(2) + addops(3) + ["v_add_u32 %s, %s, %s" % (v(VA + i), s(sDELTA), v(VA + i)) for i in range(4)])
        n = len(fill)
        for dt in range(4):
            a(pv(ks, dt))
            if ks + 2 < 4:
                for x in vread(ks + 2, dt): a(x)
            for x in fill[n * dt // 4:n * (dt + 1) // 4]: a(x)

def gen_k1(a):
    a.raw(".globl %s\n.p2align 8\n.type %s,@function\n%s:" % (NAME1, NAME1, NAME1))
    a("s_cmp_ge_u32 s2, 256")
    a("s_cbranch_scc1 L1_done")
    load_ptrs(a)
    a("v_and_b32 %s, 63, v0" % v(vLANE))
    a("v_lshrrev_b32 %s, 6, v0" % v(vT0))
    a("v_readfirstlane_b32 %s, %s" % (s(sT2), v(vT0)))
    a("s_and_b32 %s, %s, 3" % (s(sJ), s(sT2)))
    a("s_lshr_b32 %s, s2, 4" % s(sB))
    a("s_and_b32 %s, s2, 7" % s(sT0))
    a("s_lshl_b32 %s, %s, 2" % (s(sT0), s(sT0)))
    a("s_lshr_b32 %s, s2, 3" % s(sT1))
    a("s_and_b32 %s, %s, 1" % (s(sT1), s(sT1)))
    a("s_add_u32 %s, %s, %s" % (s(sH), s(sT0), s(sT1)))
    a("s_lshl_b32 %s, %s, 5" % (s(sT0), s(sB)))
    a("s_add_u32 %s, %s, %s" % (s(sT0), s(sT0), s(sH)))
    a("s_lshl_b32 %s, %s, 17" % (s(sKV0), s(sT0)))
    a("s_add_u32 %s, %s, 0x40000" % (s(sKV1), s(sKV0)))
    a("v_lshlrev_b32 %s, 4, %s" % (v(vL16), v(vLANE)))
    tr_lane_parts(a, WA, 4, 8, 256, 0, None, True, L_SIDE)
    a("s_cmp_ge_u32 %s, 4" % s(sT2))
    a("s_cbranch_scc1 L1_B")
    x_loads(a)
    a("s_mov_b32 %s, 0x%x" % (s(sC), f2u(SCALE_C)))
    tr_lane_parts(a, VA, 4, 4, 256, 0, None, False, L_V)
    a("v_and_b32 %s, 15, %s" % (v(vT0), v(vLANE)))
    a("v_lshrrev_b32 %s, 5, %s" % (v(vT1), v(vLANE)))
    a("v_xor_b32 %s, %s, %s" % (v(vT0), v(vT0), v(vT1)))
    a("v_and_b32 %s, 31, %s" % (v(vT1), v(vLANE)))
    a("v_lshlrev_b32 %s, 8, %s" % (v(vT1), v(vT1)))
    for sx in range(8):
        a("v_xor_b32 %s, %d, %s" % (v(vT2), 2 * sx, v(vT0)))
        a("v_lshl_add_u32 %s, %s, 4, %s" % (v(KA + sx), v(vT2), v(vT1)))
    a("s_lshl_b32 %s, %s, 13" % (s(sT0), s(sJ)))
    a("s_add_u32 %s, %s, 0x%x" % (s(sT0), s(sT0), L_SIDE))
    a("v_add_u32 %s, %s, %s" % (v(vQW), s(sT0), v(vL16)))
    a("s_lshl_b32 %s, %s, 2" % (s(sT0), s(sB)))
    a("s_add_u32 %s, %s, %s" % (s(sT0), s(sT0), s(sJ)))
    a("s_lshl_b32 %s, %s, 5" % (s(sT0), s(sT0)))
    a("s_add_u32 %s, %s, %s" % (s(sT0), s(sT0), s(sH)))
    a("s_lshl_b32 %s, %s, 13" % (s(sOB), s(sT0)))
    a("s_barrier")
    emit_qproj(a, [(0, 0, True), (1, 16384, False)])
    a.waitcnt(lgkm=0); a("s_barrier")
    emit_qproj(a, [(2, 32768, False), (3, 49152, False)])
    for dt in range(4): a("v_subrev_u32 %s, 0x10000, %s" % (v(WA + dt), v(WA + dt)))
    a.waitcnt(lgkm=0); a("s_barrier")
    emit_qproj(a, [(4, 0, False), (5, 49152, False)])
    for dt in range(4): a("v_add_u32 %s, 0x10000, %s" % (v(WA + dt), v(WA + dt)))
    a.waitcnt(lgkm=0); a("s_barrier")
    emit_qproj(a, [(6, 0, False), (7, 16384, False)])
    cvt_frags(a, OA, QF)
    a("s_mov_b32 %s, 0" % s(sU))
    a("s_mov_b32 %s, 0" % s(sSLOT))
    a("s_mov_b32 s50, 0x4000")
    a.waitcnt(lgkm=0); a("s_barrier")
    a.label("L1_A_unit")
    for i in range(64): a("v_mov_b32 %s, 0" % v(OA + i))
    a("v_mov_b32 %s, 0xff800000" % v(vM))
    a("v_mov_b32 %s, 0" % v(vL))
    a("s_mov_b32 %s, 0" % s(sCNT))
    a.waitcnt(lgkm=0)
    a.settle()
    a.label("L1_A_step")
    def body(a):
        a("s_add_u32 %s, %s, 1" % (s(sSLOT), s(sSLOT)))
        a("s_cmp_eq_u32 %s, 3" % s(sSLOT))
        a("s_cselect_b32 %s, 0, %s" % (s(sSLOT), s(sSLOT)))
        a("s_cselect_b32 %s, 0xffff8000, s50" % (s(sDELTA)))
        a_step(a)
        a("s_add_u32 %s, %s, 1" % (s(sCNT), s(sCNT)))
        a("s_cmp_lt_u32 %s, 8" % s(sCNT))
        a.waitcnt(lgkm=0)
        a("s_barrier")
        a("s_cbranch_scc1 L1_A_step")
    import copy
    t = Asm(); t.st = copy.deepcopy(a.st); body(t); n1 = len(t.lines); body(t)
    assert t.lines[:n1] == t.lines[n1:], "loop body differs in steady state"
    body(a)
    a("v_mov_b32 %s, %s" % (v(vT1), v(vL)))
    a("v_permlane32_swap_b32 %s, %s" % (v(vL), v(vT1)))
    a("v_add_f32 %s, %s, %s" % (v(vL), v(vL), v(vT1)))
    a("v_rcp_f32 %s, %s" % (v(vL), v(vL)))
    for i in range(64): a("v_mul_f32 %s, %s, %s" % (v(OA + i), v(vL), v(OA + i)))
    cvt_frags(a, OA, SS)
    a("s_add_u32 %s, %s, 4096" % (s(sT0), s(sOB)))
    for sx in range(8):
        a("buffer_store_dwordx4 %s, %s, %s, %s offen offset:%d" % (v(SS + 4 * sx, 4), v(vL16), s(S_WS, 4), s(sOB if sx < 4 else sT0), 1024 * (sx & 3)))
    a("s_cmp_eq_u32 %s, 1" % s(sU))
    a("s_cbranch_scc1 L1_done")
    a("s_mov_b32 %s, 1" % s(sU))
    a("s_add_u32 %s, %s, 16384" % (s(sOB), s(sOB)))
    for sx in range(8): a("ds_read_b128 %s, %s offset:%d" % (v(QF + 4 * sx, 4), v(vQW), 1024 * sx))
    a("s_branch L1_A_unit")
    a.label("L1_B")
    a.reset_state()
    a("v_lshrrev_b32 %s, 4, %s" % (v(vT0), v(vLANE)))
    a("v_and_b32 %s, 15, %s" % (v(vT1), v(vLANE)))
    a("v_lshlrev_b32 %s, 2, %s" % (v(vT2), v(vT0)))
    a("v_xor_b32 %s, %s, %s" % (v(vT2), v(vT2), v(vT1)))
    a("v_lshlrev_b32 %s, 4, %s" % (v(vT2), v(vT2)))
    a("v_lshl_add_u32 %s, %s, 13, %s" % (v(vWD), v(vT0), v(vT2)))
    a("v_lshl_add_u32 %s, %s, 8, %s" % (v(vVD), v(vT0), v(vT2)))
    a("v_xor_b32 %s, %s, %s" % (v(vT2), v(vT0), v(vT1)))
    a("v_lshlrev_b32 %s, 8, %s" % (v(vT0), v(vT0)))
    for i in range(4):
        a("v_xor_b32 %s, %d, %s" % (v(vT3), 4 * i, v(vT2)))
        a("v_lshl_add_u32 %s, %s, 4, %s" % (v(vKD + i), v(vT3), v(vT0)))
    cl = [L_SIDE, L_SIDE + 16384, L_SIDE + 32768, L_SIDE + 49152, L_K + 32768, L_V + 32768, L_SIDE, L_SIDE + 16384]
    for ch in range(6): dma_wq(a, sH, ch, cl[ch], "c%d" % ch)
    dma_kv(a, 0); dma_kv(a, 1)
    a("s_lshl_b32 %s, %s, 13" % (s(sT0), s(sJ)))
    a("s_add_u32 %s, %s, 0x%x" % (s(sT0), s(sT0), L_SIDE))
    a("v_add_u32 %s, %s, %s" % (v(vQW), s(sT0), v(vL16)))
    a("s_add_u32 %s, %s, 2" % (s(sU), s(sH)))
    a.wait_tag("c1"); a("s_barrier")
    a.wait_tag("c3"); a("s_barrier")
    dma_wq(a, sH, 6, cl[6], "c6"); dma_wq(a, sH, 7, cl[7], "c7")
    a.wait_tag("c5"); a("s_barrier")
    dma_wq(a, sU, 0, L_SIDE + 32768, "d0")
    x_loads(a)
    a.wait_tag("c7"); a("s_barrier")
    a.waitcnt(vm=0); a("s_barrier")
    for t in range(16):
        a.comment("B step %d" % t)
        if t + 1 < 8: dma_wq(a, sU, t + 1, L_SIDE + 32768 + 16384 * ((t + 1) & 1), "d%d" % (t + 1))
        if t + 2 < 16: dma_kv(a, t + 2)
        if t < 8: emit_qproj(a, [(t, 32768 + 16384 * (t & 1), t == 0)])
        if t == 7:
            cvt_frags(a, OA, QF)
            for sx in range(8): a("ds_write_b128 %s, %s offset:%d" % (v(vQW), v(QF + 4 * sx, 4), 1024 * sx))
        a.waitcnt(vm=8 if t + 2 < 16 else 0, lgkm=0)
        a("s_barrier")
    a.label("L1_done")
    a("s_endpgm")

def gen_k2(a):
    a.reset_state()
    a.raw(".globl %s\n.p2align 8\n.type %s,@function\n%s:" % (NAME2, NAME2, NAME2))
    a("s_cmp_ge_u32 s2, 256")
    a("s_cbranch_scc1 L2_done")
    load_ptrs(a)
    sW, sRB, sCB, sOB0, sOB1, sWB, sLB = 36, 37, 38, 39, 40, 44, 45
    vOD, GA = 8, 10
    ACC, BF, AF = 64, 128, 32
    a("v_and_b32 %s, 63, v0" % v(vLANE))
    a("v_lshrrev_b32 %s, 6, v0" % v(vT0))
    a("v_readfirstlane_b32 %s, %s" % (s(sW), v(vT0)))
    a("s_and_b32 %s, s2, 7" % s(sT0))
    a("s_lshl_b32 %s, %s, 2" % (s(sT0), s(sT0)))
    a("s_lshr_b32 %s, s2, 6" % s(sT1))
    a("s_add_u32 %s, %s, %s" % (s(sRB), s(sT0), s(sT1)))
    a("s_lshr_b32 %s, s2, 3" % s(sT1))
    a("s_and_b32 %s, %s, 7" % (s(sCB), s(sT1)))
    a("v_lshlrev_b32 %s, 4, %s" % (v(vL16), v(vLANE)))
    a("s_lshl_b32 %s, %s, 19" % (s(sT0), s(sRB)))
    a("s_lshl_b32 %s, %s, 15" % (s(sT1), s(sW)))
    a("s_add_u32 %s, %s, %s" % (s(sOB0), s(sT0), s(sT1)))
    a("s_add_u32 %s, %s, 0x40000" % (s(sOB1), s(sOB0)))
    a("s_lshl_b32 %s, %s, 19" % (s(sT0), s(sW)))
    a("s_lshl_b32 %s, %s, 7" % (s(sT1), s(sCB)))
    a("s_add_u32 %s, %s, %s" % (s(sWB), s(sT0), s(sT1)))
    a("s_lshl_b32 %s, %s, 14" % (s(sLB), s(sW)))
    a("v_lshrrev_b32 %s, 3, %s" % (v(vT0), v(vLANE)))
    a("v_and_b32 %s, 2, %s" % (v(vT1), v(vT0)))
    a("v_lshlrev_b32 %s, 1, %s" % (v(vT1), v(vT1)))
    a("v_and_b32 %s, 7, %s" % (v(vT2), v(vLANE)))
    a("v_xor_b32 %s, %s, %s" % (v(vT1), v(vT1), v(vT2)))
    a("v_lshlrev_b32 %s, 4, %s" % (v(vT1), v(vT1)))
    a("v_lshl_add_u32 %s, %s, 10, %s" % (v(vOD), v(vT0), v(vT1)))
    tr_lane_parts(a, GA, 2, 4, 128, 1, None, False, 0)
    for i in range(2): a("v_add_u32 %s, %s, %s" % (v(GA + i), s(sLB), v(GA + i)))
    def issue(n):
        sl = n & 1
        for i in range(8):
            if (i & 3) == 0:
                a("s_add_u32 m0, %s, 0x%x" % (s(sLB), sl * 8192 + 4096 * (i >> 2)))
            a("s_add_u32 %s, %s, 0x%x" % (s(sT0), s(sWB), (64 * n + 8 * i) * 1024 - 1024 * (i & 3)))
            a("buffer_load_dwordx4 %s, %s, %s offen offset:%d lds" % (v(vOD), s(S_WO, 4), s(sT0), 1024 * (i & 3)), tag="w%d" % n)
        for qt in range(2):
            a("s_add_u32 %s, %s, 0x%x" % (s(sT0), s(sOB0 + qt), 4096 * n))
            for ks in range(4):
                a("buffer_load_dwordx4 %s, %s, %s, %s offen offset:%d" % (v(BF + 32 * sl + 16 * qt + 4 * ks, 4), v(vL16), s(S_WS, 4), s(sT0), 1024 * ks), tag="o%d" % n)
    issue(0); issue(1)
    for n in range(8):
        sl = n & 1
        a.wait_tag("o%d" % n)
        for ks in range(4):
            for nt in range(2):
                f = AF + 4 * (2 * ks + nt)
                for p in range(2):
                    a("ds_read_b64_tr_b16 %s, %s offset:%d" % (v(f + 2 * p, 2), v(GA + nt), sl * 8192 + 2048 * ks + 1024 * p))
        for ks in range(4):
            for nt in range(2):
                for qt in range(2):
                    acc = ACC + 16 * (2 * nt + qt)
                    a("v_mfma_f32_32x32x16_bf16 %s, %s, %s, %s" % (v(acc, 16), v(AF + 4 * (2 * ks + nt), 4), v(BF + 32 * sl + 16 * qt + 4 * ks, 4), "0" if (n == 0 and ks == 0) else v(acc, 16)))
        if n + 2 < 8: issue(n + 2)
    a("v_add_u32 %s, %s, %s" % (v(vT0), s(sLB), v(vL16)))
    a("s_lshl_b32 %s, %s, 11" % (s(sT0), s(sW)))
    a("v_add_u32 %s, %s, %s" % (v(vT1), s(sT0), v(vL16)))
    a("v_add_u32 %s, 0x10000, %s" % (v(vT2), v(vT1)))
    for q in range(16): a("ds_write_b128 %s, %s offset:%d" % (v(vT0), v(ACC + 4 * q, 4), 1024 * q))
    a.waitcnt(lgkm=0); a("s_barrier")
    for w in range(8):
        for g in range(2):
            a("ds_read_b128 %s, %s offset:%d" % (v(128 + 8 * w + 4 * g, 4), v(vT1 if w < 4 else vT2), 16384 * (w & 3) + 1024 * g))
    for w in range(1, 8):
        for i in range(8): a("v_add_f32 %s, %s, %s" % (v(128 + i), v(128 + i), v(128 + 8 * w + i)))
    for i in range(4): a("v_cvt_pk_bf16_f32 %s, %s, %s" % (v(32 + i), v(128 + 2 * i), v(128 + 2 * i + 1)))
    a("v_permlane32_swap_b32 v32, v34")
    a("v_permlane32_swap_b32 v33, v35")
    a("v_and_b32 %s, 31, %s" % (v(vT0), v(vLANE)))
    a("v_lshlrev_b32 %s, 10, %s" % (v(vT0), v(vT0)))
    a("v_lshrrev_b32 %s, 5, %s" % (v(vT1), v(vLANE)))
    a("v_lshl_add_u32 %s, %s, 4, %s" % (v(vT0), v(vT1), v(vT0)))
    a("s_lshl_b32 %s, %s, 16" % (s(sT0), s(sRB)))
    a("s_lshl_b32 %s, %s, 7" % (s(sT1), s(sCB)))
    a("s_add_u32 %s, %s, %s" % (s(sT0), s(sT0), s(sT1)))
    a("s_lshr_b32 %s, %s, 2" % (s(sT1), s(sW)))
    a("s_lshl_b32 %s, %s, 6" % (s(sT1), s(sT1)))
    a("s_add_u32 %s, %s, %s" % (s(sT0), s(sT0), s(sT1)))
    a("s_lshr_b32 %s, %s, 1" % (s(sT1), s(sW)))
    a("s_and_b32 %s, %s, 1" % (s(sT1), s(sT1)))
    a("s_lshl_b32 %s, %s, 15" % (s(sT1), s(sT1)))
    a("s_add_u32 %s, %s, %s" % (s(sT0), s(sT0), s(sT1)))
    a("s_and_b32 %s, %s, 1" % (s(sT1), s(sW)))
    a("s_lshl_b32 %s, %s, 5" % (s(sT1), s(sT1)))
    a("s_add_u32 %s, %s, %s" % (s(sT0), s(sT0), s(sT1)))
    a("buffer_store_dwordx4 v[32:35], %s, %s, %s offen" % (v(vT0), s(S_OUT, 4), s(sT0)))
    a.label("L2_done")
    a("s_endpgm")

def kd(name, vg=256, sg=96):
    return """.p2align 6
.amdhsa_kernel %s
  .amdhsa_next_free_vgpr %d
  .amdhsa_next_free_sgpr %d
  .amdhsa_accum_offset %d
  .amdhsa_group_segment_fixed_size 0
  .amdhsa_kernarg_size 64
  .amdhsa_user_sgpr_count 2
  .amdhsa_user_sgpr_kernarg_segment_ptr 1
  .amdhsa_system_sgpr_workgroup_id_x 1
.end_amdhsa_kernel
""" % (name, vg, sg, vg)

a = Asm()
which = sys.argv[2] if len(sys.argv) > 2 else "12"
if "1" in which: a.raw("; @launch kernel=%s grid=(256,1,1) block=(512,1,1) lds=163840" % NAME1)
if "2" in which: a.raw("; @launch kernel=%s grid=(256,1,1) block=(512,1,1) lds=131072" % NAME2)
a.raw('.amdgcn_target "amdgcn-amd-amdhsa--gfx950"\n.text')
gen_k1(a)
gen_k2(a)
a.raw('.section .rodata,"a"')
a.raw(kd(NAME1)); a.raw(kd(NAME2))
open(OUT, "w").write(a.text())
print("instrs", a.count, "nops", a.nops)
```
